```python
import torch

def _softmax(x, axis=-1):
    return torch.softmax(x, dim=axis)
def _gelu(x):
    return torch.nn.functional.gelu(x, approximate="tanh")
def _silu(x):
    return torch.nn.functional.silu(x)
def _sigmoid(x):
    return torch.sigmoid(x)
def _layernorm(x, axis=-1, eps=1e-5):
    m = x.mean(dim=axis, keepdim=True)
    v = x.var(dim=axis, keepdim=True, unbiased=False)
    return (x - m) / torch.sqrt(v + eps)
def _scatter_add(tgt, idx, src, axis=0):
    return tgt.clone().index_add_(axis, idx, src)
def _segment_sum(src, seg, n):
    out = torch.zeros((n,) + src.shape[1:], dtype=src.dtype)
    return out.index_add_(0, seg, src)
def _pad(x, pw):
    flat = tuple(v for pair in reversed(pw) for v in pair)
    return torch.nn.functional.pad(x, flat)

kernel_name = 'standalone__kv_cache_quant_int4_int2_kv_with_per_channel_or_per_token_scales__sampling'

def setup_inputs():

    _w = (lambda a: (lambda t: t.to(torch.bfloat16) if t.is_floating_point() else t)(torch.as_tensor(a)))
    B = 8
    Sq = 32
    Skv = 8192
    Hq = 32
    Hkv = 8
    Dh = 128
    bits = 4
    G = 64
    if G <= 0 or G >= Skv:
        G = max(1, Skv // 2)
    Skv = (Skv // G) * G
    ngk = Skv // G
    qmax = (1 << bits) - 1
    return {
        "q": _w((lambda *s: torch.randn(*s, dtype=torch.bfloat16) * 1.6)(B, Hq, Sq, Dh)),
        "qk": _w(torch.randint(0, qmax + 1, (B, Hkv, Skv, Dh)).to(torch.int32)),
        "qv": _w(torch.randint(0, qmax + 1, (B, Hkv, Skv, Dh)).to(torch.int32)),
        "k_scales": _w(torch.abs((lambda *s: torch.randn(*s, dtype=torch.bfloat16) * 1.6)(B, Hkv, ngk, Dh)) * 0.05 + 0.02),
        "k_zeros": _w((lambda *s: torch.randn(*s, dtype=torch.bfloat16) * 1.6)(B, Hkv, ngk, Dh) + float(qmax) / 2.0),
        "v_scales": _w(torch.abs((lambda *s: torch.randn(*s, dtype=torch.bfloat16) * 0.05)(B, Hkv, Skv, 1)) * 0.05 + 0.02),
        "v_zeros": _w((lambda *s: torch.randn(*s, dtype=torch.bfloat16) * 0.05)(B, Hkv, Skv, 1) + float(qmax) / 2.0),
    }

def reference(q, qk, qv, k_scales, k_zeros, v_scales, v_zeros):
    B, Hq, Sq, Dh = q.shape
    Hkv, Skv = qk.shape[1], qk.shape[2]
    ngk = k_scales.shape[2]
    G = Skv // ngk
    ks = (lambda x, n, axis: torch.repeat_interleave(x, n, dim=axis))(k_scales, G, axis=2)
    kz = (lambda x, n, axis: torch.repeat_interleave(x, n, dim=axis))(k_zeros, G, axis=2)
    k = ((lambda x, dt: x.to(dt))(qk, q.dtype) - kz) * ks
    v = ((lambda x, dt: x.to(dt))(qv, q.dtype) - v_zeros) * v_scales
    rep = Hq // Hkv
    if rep > 1:
        k = (lambda x, n, axis: torch.repeat_interleave(x, n, dim=axis))(k, rep, axis=1)
        v = (lambda x, n, axis: torch.repeat_interleave(x, n, dim=axis))(v, rep, axis=1)
    scale = float(Dh) ** -0.5
    logits = torch.einsum("bhqd,bhkd->bhqk", q, k) * scale
    p = _softmax(logits, axis=-1)
    o = torch.einsum("bhqk,bhkd->bhqd", p, v)
    return o
```

```python
import math, struct, sys

NAME = "standalone__kv_cache_quant_int4_int2_kv_with_per_channel_or_per_token_scales__sampling"
OUT = f"cdna_kernels/{NAME}.s"

def f32bits(x):
    return struct.unpack("<I", struct.pack("<f", x))[0]

KROW = 272
KBUF = [0, 64 * KROW]
VBASE = 2 * 64 * KROW
VBUF = [0, 16384]
KPAR = VBASE + 32768
VPAR = KPAR + 32768
TICK = VPAR + 16384
LDS_BYTES = TICK + 256

NT = 32
CSCALE = (128.0 ** -0.5) * math.log2(math.e)
THR_RAW = 8.0 / CSCALE

vL, vKg, vVg, vKw, vVw, vKr, vVr, vKp, vVp = 1, 2, 3, 4, 5, 6, 7, 8, 9
vM, vNegMc, vThr, vLs0, vLs1, vT0, vT1 = 10, 11, 12, 13, 14, 15, 120
vKa, vKb = 16, 20
vVa, vVb = 24, 32
vTK = 40
vS = [56, 72]
vP = [88, 96]
vTV = 104
vSTG = {("K", 0): 128, ("V", 0): 160, ("K", 1): 192, ("V", 1): 224}
aO, aQ, aKf, aVf = 0, 64, 96, 160

sK, sV, sQ, sWS, sDBG = 4, 8, 12, 16, 20
sKS, sKZ, sVS, sVZ = 24, 28, 32, 36
sPTR = 40
sG, sSPL, sOFF, sOFF2, sCNT, sC, sTICK, sWV = 60, 61, 62, 63, 64, 65, 66, 3
sT0, sT1, sT2, sT3 = 68, 69, 70, 71
sOUT = 72

L = []
def I(s):
    L.append("    " + s)
def LBL(s):
    L.append(s + ":")
def C(s):
    L.append("    ; " + s)

def vr(b, n):
    return f"v[{b}:{b+n-1}]"
def ar(b, n):
    return f"a[{b}:{b+n-1}]"
def sr(b, n):
    return f"s[{b}:{b+n-1}]"

POL = "nt"

def issue_loads(kind, st):
    base = vSTG[(kind, st)]
    for j in range(8):
        if kind == "K":
            so = sOFF if j < 4 else sOFF2
            imm = (j & 3) * 1024
            I(f"buffer_load_dwordx4 {vr(base+4*j,4)}, v{vKg}, {sr(sK,4)}, s{so} offen offset:{imm} {POL}")
        else:
            so = sOFF if j < 4 else sOFF2
            imm = (j & 3) * 512
            I(f"buffer_load_dwordx4 {vr(base+4*j,4)}, v{vVg}, {sr(sV,4)}, s{so} offen offset:{imm} {POL}")

def param_reads(koff, voff):
    I(f"ds_read_b128 {vr(vKa,4)}, v{vKp} offset:{koff}")
    I(f"ds_read_b128 {vr(vKb,4)}, v{vKp} offset:{koff+512}")
    I(f"ds_read_b128 {vr(vVa,4)}, v{vVp} offset:{voff}")
    I(f"ds_read_b128 {vr(vVa+4,4)}, v{vVp} offset:{voff+32}")
    I(f"ds_read_b128 {vr(vVb,4)}, v{vVp} offset:{voff+256}")
    I(f"ds_read_b128 {vr(vVb+4,4)}, v{vVp} offset:{voff+288}")

def convert_K(st, buf, reissue):
    R = vSTG[("K", st)]
    for j in range(8):
        for k in range(4):
            I(f"v_cvt_f32_i32 v{R+4*j+k}, v{R+4*j+k}")
        for k in range(4):
            I(f"v_fma_f32 v{R+4*j+k}, v{R+4*j+k}, v{vKa+k}, v{vKb+k}")
        I(f"v_cvt_pk_bf16_f32 v{vTK+2*j}, v{R+4*j}, v{R+4*j+1}")
        I(f"v_cvt_pk_bf16_f32 v{vTK+2*j+1}, v{R+4*j+2}, v{R+4*j+3}")
    if reissue:
        issue_loads("K", st)
    for j in range(8):
        I(f"ds_write_b64 v{vKw}, {vr(vTK+2*j,2)} offset:{KBUF[buf]+j*2*KROW}")

def convert_V(st, buf, reissue):
    R = vSTG[("V", st)]
    for j in range(8):
        for c in range(4):
            I(f"v_cvt_f32_i32 v{R+4*j+c}, v{R+4*j+c}")
        for c in range(4):
            I(f"v_fma_f32 v{R+4*j+c}, v{R+4*j+c}, v{vVa+j}, v{vVb+j}")
        if j & 1:
            for c in range(4):
                I(f"v_cvt_pk_bf16_f32 v{vTV+4*c+(j>>1)}, v{R+4*(j-1)+c}, v{R+4*j+c}")
    if reissue:
        issue_loads("V", st)
    for c in range(4):
        I(f"ds_write_b128 v{vVw}, {vr(vTV+4*c,4)} offset:{VBUF[buf]+c*512}")

rescale_sites = []

def softmax(kb, tag):
    S = vS[kb]
    I(f"v_max3_f32 v{vT0}, v{S}, v{S+1}, v{S+2}")
    for i in range(3, 15, 2):
        I(f"v_max3_f32 v{vT0}, v{vT0}, v{S+i}, v{S+i+1}")
    I(f"v_max_f32 v{vT0}, v{vT0}, v{S+15}")
    I(f"v_mov_b32 v{vT1}, v{vT0}")
    I("s_nop 1")
    I(f"v_permlane32_swap_b32 v{vT0}, v{vT1}")
    I(f"v_max_f32 v{vT0}, v{vT0}, v{vT1}")
    I(f"v_cmp_gt_f32 vcc, v{vT0}, v{vThr}")
    I(f"s_cbranch_vccnz L_resc_{tag}")
    LBL(f"L_back_{tag}")
    rescale_sites.append(tag)
    for i in range(16):
        I(f"v_fma_f32 v{S+i}, v{S+i}, s{sC}, v{vNegMc}")
    for i in range(16):
        I(f"v_exp_f32 v{S+i}, v{S+i}")
    I("s_nop 0")
    for i in range(0, 16, 2):
        I(f"v_add_f32 v{vLs0}, v{vLs0}, v{S+i}")
        I(f"v_add_f32 v{vLs1}, v{vLs1}, v{S+i+1}")
        I(f"v_cvt_pk_bf16_f32 v{vP[kb]+i//2}, v{S+i}, v{S+i+1}")
    I("s_nop 1")

def emit_rescale(tag):
    LBL(f"L_resc_{tag}")
    C("rare path: raise the reference max, rescale O and l")
    I(f"v_max_f32 v{vT0}, v{vT0}, v{vM}")
    I(f"v_sub_f32 v{vT1}, v{vM}, v{vT0}")
    I(f"v_mul_f32 v{vT1}, s{sC}, v{vT1}")
    I(f"v_exp_f32 v{vT1}, v{vT1}")
    I(f"v_mov_b32 v{vM}, v{vT0}")
    I(f"v_mul_f32 v{vNegMc}, s{sC}, v{vT0}")
    I(f"v_sub_f32 v{vNegMc}, 0, v{vNegMc}")
    I(f"v_add_f32 v{vThr}, 0x{f32bits(THR_RAW):08x}, v{vT0}")
    I(f"v_mul_f32 v{vLs0}, v{vLs0}, v{vT1}")
    I(f"v_mul_f32 v{vLs1}, v{vLs1}, v{vT1}")
    I("s_nop 15")
    I("s_nop 7")
    for r in range(0, 64, 4):
        for k in range(4):
            I(f"v_accvgpr_read_b32 v{vTK+k}, a{aO+r+k}")
        for k in range(4):
            I(f"v_mul_f32 v{vTK+k}, v{vTK+k}, v{vT1}")
        for k in range(4):
            I(f"v_accvgpr_write_b32 a{aO+r+k}, v{vTK+k}")
    I(f"s_branch L_back_{tag}")

def pv(kb):
    for t in range(2):
        kg = 2 * kb + t
        for c in range(4):
            I(f"v_mfma_f32_32x32x16_bf16 {ar(aO+16*c,16)}, {ar(aVf+(kg*4+c)*4,4)}, {vr(vP[kb]+4*t,4)}, {ar(aO+16*c,16)}")

def compute(buf, tag, koff, voff, params=True):
    C(f"---- compute tile from LDS buffer {buf}")
    for kb in range(2):
        for t in range(8):
            I(f"ds_read_b128 {ar(aKf+(kb*8+t)*4,4)}, v{vKr} offset:{KBUF[buf]+kb*32*KROW+t*32}")
    I("s_waitcnt lgkmcnt(8)")
    vreads = [(kg, c) for kg in range(4) for c in range(4)]
    for t in range(8):
        srcC = "0" if t == 0 else vr(vS[0], 16)
        I(f"v_mfma_f32_32x32x16_bf16 {vr(vS[0],16)}, {ar(aKf+t*4,4)}, {ar(aQ+t*4,4)}, {srcC}")
        for (kg, c) in vreads[2*t:2*t+2]:
            I(f"ds_read_b128 {ar(aVf+(kg*4+c)*4,4)}, v{vVr} offset:{VBUF[buf]+kg*4096+c*512}")
    I("s_waitcnt lgkmcnt(15)")
    for t in range(8):
        srcC = "0" if t == 0 else vr(vS[1], 16)
        I(f"v_mfma_f32_32x32x16_bf16 {vr(vS[1],16)}, {ar(aKf+(8+t)*4,4)}, {ar(aQ+t*4,4)}, {srcC}")
    I("s_nop 4")
    softmax(0, tag + "a")
    I("s_waitcnt lgkmcnt(0)")
    if params:
        param_reads(koff, voff)
    pv(0)
    softmax(1, tag + "b")
    pv(1)

def body(p, tag, koff, voff, last_convert=False):
    compute(p, tag, koff, voff)
    q = p ^ 1
    C("---- convert next tile")
    I("s_waitcnt vmcnt(24) lgkmcnt(0)")
    convert_K(q, q, not last_convert)
    I(f"s_waitcnt vmcnt({16 if last_convert else 24})")
    convert_V(q, q, not last_convert)
    if not last_convert:
        I(f"s_add_u32 s{sOFF}, s{sOFF}, 32768")
        I(f"s_add_u32 s{sOFF2}, s{sOFF2}, 32768")
    I("s_waitcnt lgkmcnt(0)")
    I("s_barrier")

def srd(s, ptr, off_sreg, nbytes):
    I(f"s_add_u32 s{s}, s{ptr}, s{off_sreg}")
    I(f"s_addc_u32 s{s+1}, s{ptr+1}, 0")
    I(f"s_mov_b32 s{s+2}, {nbytes}")
    I(f"s_mov_b32 s{s+3}, 0x00020000")

def gen():
    hdr = open(f"cdna_kernels/{NAME}.s.ref").read().split("\n")
    head = []
    for ln in hdr:
        if ln.startswith("; @launch"):
            head.append(f"; @launch grid=(256,1,1) block=(256,1,1) lds={LDS_BYTES}")
        elif ln.startswith(";"):
            head.append(ln)
        else:
            break
    L.extend(head)
    L.append('.amdgcn_target "amdgcn-amd-amdhsa--gfx950"')
    L.append(".text")
    L.append(f".globl {NAME}_kernel")
    L.append(".p2align 8")
    L.append(f".type {NAME}_kernel,@function")
    LBL(f"{NAME}_kernel")
    I("s_cmp_ge_u32 s2, 256")
    I("s_cbranch_scc1 L_end")
    I(f"s_load_dwordx16 {sr(sPTR,16)}, s[0:1], 0")
    I(f"s_load_dwordx4 {sr(sPTR+16,4)}, s[0:1], 64")
    C("lane / wave ids")
    I(f"v_and_b32 v{vL}, 63, v0")
    I(f"v_lshrrev_b32 v{vT0}, 6, v0")
    I("s_nop 0")
    I(f"v_readfirstlane_b32 s{sWV}, v{vT0}")
    C("group / split")
    I(f"s_and_b32 s{sT0}, s2, 7")
    I(f"s_lshr_b32 s{sT1}, s2, 3")
    I(f"s_and_b32 s{sSPL}, s{sT1}, 3")
    I(f"s_lshr_b32 s{sT1}, s{sT1}, 2")
    I(f"s_lshl_b32 s{sT1}, s{sT1}, 3")
    I(f"s_add_u32 s{sG}, s{sT1}, s{sT0}")
    I(f"s_mov_b32 s{sC}, 0x{f32bits(CSCALE):08x}")
    dq, hh, tw = 121, 122, 123
    I(f"v_and_b32 v{dq}, 31, v{vL}")
    I(f"v_lshrrev_b32 v{hh}, 5, v{vL}")
    I(f"v_lshlrev_b32 v{tw}, 13, v{vT0}")
    I(f"v_lshl_add_u32 v{vKg}, v{vL}, 4, v{tw}")
    I(f"v_lshl_add_u32 v{vVg}, v{dq}, 4, v{tw}")
    I(f"v_lshl_add_u32 v{vVg}, v{hh}, 11, v{vVg}")
    I(f"v_lshl_add_u32 v{tw}, v{vT0}, 4, v{hh}")
    I(f"v_mul_u32_u24 v{tw}, {KROW}, v{tw}")
    I(f"v_lshl_add_u32 v{vKw}, v{dq}, 3, v{tw}")
    I(f"v_lshlrev_b32 v{tw}, 12, v{vT0}")
    I(f"v_lshl_add_u32 v{tw}, v{hh}, 11, v{tw}")
    I(f"v_lshl_add_u32 v{tw}, v{dq}, 4, v{tw}")
    I(f"v_add_u32 v{vVw}, {VBASE}, v{tw}")
    I(f"v_mul_u32_u24 v{tw}, {KROW}, v{dq}")
    I(f"v_lshl_add_u32 v{vKr}, v{hh}, 4, v{tw}")
    I(f"v_lshlrev_b32 v{tw}, 11, v{hh}")
    I(f"v_lshl_add_u32 v{tw}, v{dq}, 4, v{tw}")
    I(f"v_add_u32 v{vVr}, {VBASE}, v{tw}")
    I(f"v_lshlrev_b32 v{tw}, 4, v{dq}")
    I(f"v_add_u32 v{vKp}, {KPAR}, v{tw}")
    I(f"v_lshlrev_b32 v{tw}, 6, v{vT0}")
    I(f"v_lshl_add_u32 v{tw}, v{hh}, 4, v{tw}")
    I(f"v_add_u32 v{vVp}, {VPAR}, v{tw}")
    vQo = 124
    I(f"v_lshl_add_u32 v{tw}, v{vT0}, 5, v{dq}")
    I(f"v_lshlrev_b32 v{tw}, 8, v{tw}")
    I(f"v_lshl_add_u32 v{vQo}, v{hh}, 4, v{tw}")
    I(f"v_lshlrev_b32 v125, 5, v0")
    I(f"v_lshlrev_b32 v126, 4, v0")
    I("s_waitcnt lgkmcnt(0)")
    C("SRDs")
    pQ, pK, pV, pKS, pKZ, pVS, pVZ, pOUT, pDBG, pWS = [sPTR + 2 * i for i in range(10)]
    I(f"s_lshl_b32 s{sT0}, s{sG}, 2")
    I(f"s_add_u32 s{sT0}, s{sT0}, s{sSPL}")
    I(f"s_lshl_b32 s{sT1}, s{sT0}, 20")
    srd(sK, pK, sT1, 1 << 20)
    srd(sV, pV, sT1, 1 << 20)
    I(f"s_lshl_b32 s{sT1}, s{sT0}, 13")
    srd(sKS, pKS, sT1, 8192)
    srd(sKZ, pKZ, sT1, 8192)
    I(f"s_lshl_b32 s{sT1}, s{sT0}, 12")
    srd(sVS, pVS, sT1, 4096)
    srd(sVZ, pVZ, sT1, 4096)
    I(f"s_lshl_b32 s{sT1}, s{sG}, 15")
    srd(sQ, pQ, sT1, 32768)
    srd(sOUT, pOUT, sT1, 32768)
    I(f"s_lshl_b32 s{sT1}, s{sG}, 2")
    srd(sDBG, pDBG, sT1, 4)
    SLOT = 65536 + 2048
    I(f"s_mul_i32 s{sT1}, s{sG}, {3*SLOT}")
    srd(sWS, pWS, sT1, 3 * SLOT)
    C("ticket (wave 0, lane 0)")
    vTick = 127
    I(f"v_mov_b32 v{vTick}, 1")
    I(f"v_mov_b32 v{tw}, 0")
    I(f"s_cmp_lg_u32 s{sWV}, 0")
    I("s_cbranch_scc1 L_noticket")
    I("s_mov_b64 exec, 1")
    I(f"buffer_atomic_add v{vTick}, v{tw}, {sr(sDBG,4)}, 0 offen sc0 sc1")
    I("s_mov_b64 exec, -1")
    LBL("L_noticket")
    C("parameter loads")
    I(f"buffer_load_dwordx4 v[56:59], v125, {sr(sKS,4)}, 0 offen")
    I(f"buffer_load_dwordx4 v[60:63], v125, {sr(sKS,4)}, 0 offen offset:16")
    I(f"buffer_load_dwordx4 v[64:67], v125, {sr(sKZ,4)}, 0 offen")
    I(f"buffer_load_dwordx4 v[68:71], v125, {sr(sKZ,4)}, 0 offen offset:16")
    I(f"buffer_load_dwordx4 v[72:75], v126, {sr(sVS,4)}, 0 offen")
    I(f"buffer_load_dwordx4 v[76:79], v126, {sr(sVZ,4)}, 0 offen")
    C("Q fragments")
    for t in range(8):
        I(f"buffer_load_dwordx4 {ar(aQ+4*t,4)}, v{vQo}, {sr(sQ,4)}, 0 offen offset:{t*32}")
    C("tiles 0 and 1")
    I(f"s_mov_b32 s{sOFF}, 0")
    I(f"s_mov_b32 s{sOFF2}, 4096")
    issue_loads("K", 0)
    issue_loads("V", 0)
    I(f"s_mov_b32 s{sOFF}, 32768")
    I(f"s_mov_b32 s{sOFF2}, {32768+4096}")
    issue_loads("K", 1)
    issue_loads("V", 1)
    I(f"s_mov_b32 s{sOFF}, {2*32768}")
    I(f"s_mov_b32 s{sOFF2}, {2*32768+4096}")
    C("init accumulators")
    for r in range(64):
        I(f"v_accvgpr_write_b32 a{aO+r}, 0")
    I(f"v_mov_b32 v{vM}, 0x{f32bits(-3.0e38):08x}")
    I(f"v_mov_b32 v{vThr}, 0x{f32bits(-3.0e38):08x}")
    I(f"v_mov_b32 v{vNegMc}, 0")
    I(f"v_mov_b32 v{vLs0}, 0")
    I(f"v_mov_b32 v{vLs1}, 0")
    I(f"v_lshrrev_b32 v{tw}, 3, v0")
    I(f"v_and_b32 v{dq}, 7, v0")
    I(f"v_lshlrev_b32 v125, 10, v{tw}")
    I(f"v_lshl_add_u32 v125, v{dq}, 6, v125")
    I(f"v_add_u32 v125, {KPAR}, v125")
    I(f"v_lshlrev_b32 v126, 9, v{tw}")
    I(f"v_lshl_add_u32 v126, v{dq}, 5, v126")
    I(f"v_add_u32 v126, {VPAR}, v126")
    I("s_waitcnt vmcnt(40)")
    C("K params: a = scale, b = -zero*scale (f32)")
    A, B = 80, 96
    for i in range(8):
        I(f"v_lshlrev_b32 v{A+2*i}, 16, v{56+i}")
        I(f"v_and_b32 v{A+2*i+1}, 0xffff0000, v{56+i}")
        I(f"v_lshlrev_b32 v{B+2*i}, 16, v{64+i}")
        I(f"v_and_b32 v{B+2*i+1}, 0xffff0000, v{64+i}")
    for i in range(16):
        I(f"v_mul_f32 v{B+i}, -v{B+i}, v{A+i}")
    for i in range(4):
        I(f"ds_write_b128 v125, {vr(A+4*i,4)} offset:{16*i}")
        I(f"ds_write_b128 v125, {vr(B+4*i,4)} offset:{512+16*i}")
    C("V params")
    A2, B2 = 56, 64
    for i in range(4):
        I(f"v_lshlrev_b32 v{112+2*i}, 16, v{72+i}")
        I(f"v_and_b32 v{112+2*i+1}, 0xffff0000, v{72+i}")
    for i in range(4):
        I(f"v_lshlrev_b32 v{B2+2*i}, 16, v{76+i}")
        I(f"v_and_b32 v{B2+2*i+1}, 0xffff0000, v{76+i}")
    for i in range(8):
        I(f"v_mul_f32 v{B2+i}, -v{B2+i}, v{112+i}")
    I(f"ds_write_b128 v126, v[112:115] offset:0")
    I(f"ds_write_b128 v126, v[116:119] offset:16")
    I(f"ds_write_b128 v126, {vr(B2,4)} offset:256")
    I(f"ds_write_b128 v126, {vr(B2+4,4)} offset:272")
    C("publish the ticket to the workgroup")
    I(f"s_cmp_lg_u32 s{sWV}, 0")
    I("s_cbranch_scc1 L_noticket2")
    I(f"v_mov_b32 v{tw}, {TICK}")
    I("s_mov_b64 exec, 1")
    I(f"ds_write_b32 v{tw}, v{vTick}")
    I("s_mov_b64 exec, -1")
    LBL("L_noticket2")
    I("s_waitcnt lgkmcnt(0)")
    I("s_barrier")
    C("convert tile 0")
    param_reads(0, 0)
    I(f"v_mov_b32 v{tw}, {TICK}")
    I(f"ds_read_b32 v{vTick}, v{tw}")
    I("s_waitcnt vmcnt(24) lgkmcnt(0)")
    I(f"v_readfirstlane_b32 s{sTICK}, v{vTick}")
    convert_K(0, 0, True)
    I("s_waitcnt vmcnt(24)")
    convert_V(0, 0, True)
    I(f"s_add_u32 s{sOFF}, s{sOFF}, 32768")
    I(f"s_add_u32 s{sOFF2}, s{sOFF2}, 32768")
    I(f"s_and_b32 s{sTICK}, s{sTICK}, 0xff")
    I(f"s_mov_b32 s{sCNT}, 0")
    I("s_waitcnt lgkmcnt(0)")
    I("s_barrier")
    LBL("L_loop")
    body(0, "l0", 1024, 512)
    body(1, "l1", 2048, 1024)
    I(f"v_add_u32 v{vKp}, 2048, v{vKp}")
    I(f"v_add_u32 v{vVp}, 1024, v{vVp}")
    I(f"s_add_u32 s{sCNT}, s{sCNT}, 1")
    I(f"s_cmp_lt_u32 s{sCNT}, {NT//2-1}")
    I("s_cbranch_scc1 L_loop")
    body(0, "p0", 1024, 512, last_convert=True)
    compute(1, "p1", 0, 0, params=False)
    C("---- epilogue")
    I(f"v_add_f32 v{vLs0}, v{vLs0}, v{vLs1}")
    I(f"v_mov_b32 v{vLs1}, v{vLs0}")
    I("s_nop 1")
    I(f"v_permlane32_swap_b32 v{vLs0}, v{vLs1}")
    I(f"v_add_f32 v{vLs0}, v{vLs0}, v{vLs1}")
    I(f"s_lshl_b32 s{sT0}, s{sWV}, 14")
    I(f"v_lshlrev_b32 v{vT0}, 4, v{vL}")
    I(f"v_add_u32 v{vT0}, s{sT0}, v{vT0}")
    I(f"s_lshl_b32 s{sT0}, s{sWV}, 9")
    I(f"s_add_u32 s{sT0}, s{sT0}, 65536")
    I(f"v_lshlrev_b32 v{vT1}, 3, v{vL}")
    I(f"v_add_u32 v{vT1}, s{sT0}, v{vT1}")
    I("s_nop 15")
    I(f"s_cmp_eq_u32 s{sTICK}, 3")
    I("s_cbranch_scc1 L_combine")
    C("publish partial: slot = ticket")
    I(f"s_mul_i32 s{sT0}, s{sTICK}, {SLOT}")
    I(f"s_add_u32 s{sT1}, s{sT0}, 4096")
    I(f"s_add_u32 s{sT2}, s{sT0}, 8192")
    I(f"s_add_u32 s{sT3}, s{sT0}, 12288")
    I(f"v_mov_b32 v16, v{vM}")
    I(f"v_mov_b32 v17, v{vLs0}")
    so = [sT0, sT1, sT2, sT3]
    for k in range(16):
        I(f"buffer_store_dwordx4 {ar(aO+4*k,4)}, v{vT0}, {sr(sWS,4)}, s{so[k>>2]} offen offset:{(k&3)*1024} sc0 sc1")
    I(f"buffer_store_dwordx2 v[16:17], v{vT1}, {sr(sWS,4)}, s{sT0} offen sc0 sc1")
    I("s_waitcnt vmcnt(0)")
    I("s_barrier")
    I(f"s_cmp_lg_u32 s{sWV}, 0")
    I("s_cbranch_scc1 L_end")
    I("v_mov_b32 v16, 0x100")
    I("v_mov_b32 v17, 0")
    I("s_mov_b64 exec, 1")
    I(f"buffer_atomic_add v16, v17, {sr(sDBG,4)}, 0 offen sc1")
    I("s_waitcnt vmcnt(0)")
    I("s_endpgm")
    LBL("L_combine")
    I("v_mov_b32 v17, 0")
    I(f"s_mov_b32 s{sT1}, 0")
    LBL("L_poll")
    I(f"buffer_load_dword v16, v17, {sr(sDBG,4)}, 0 offen sc0 sc1")
    I("s_waitcnt vmcnt(0)")
    I(f"v_readfirstlane_b32 s{sT0}, v16")
    I("s_nop 3")
    I(f"s_lshr_b32 s{sT0}, s{sT0}, 8")
    I(f"s_cmp_eq_u32 s{sT0}, 3")
    I("s_cbranch_scc1 L_ready")
    I("s_sleep 2")
    I(f"s_add_u32 s{sT1}, s{sT1}, 1")
    I(f"s_cmp_lt_u32 s{sT1}, 0x400000")
    I("s_cbranch_scc1 L_poll")
    LBL("L_ready")
    for s in range(3):
        I(f"s_mov_b32 s{sT0}, {s*SLOT}")
        I(f"buffer_load_dwordx2 v[{16+2*s}:{17+2*s}], v{vT1}, {sr(sWS,4)}, s{sT0} offen sc0 sc1")
    for s in range(3):
        for kq in range(4):
            I(f"s_mov_b32 s{sT0}, {s*SLOT+kq*4096}")
            for k in range(4):
                I(f"buffer_load_dwordx4 {vr(64+64*s+16*kq+4*k,4)}, v{vT0}, {sr(sWS,4)}, s{sT0} offen offset:{k*1024} sc0 sc1")
    I("s_waitcnt vmcnt(48)")
    I(f"v_max3_f32 v22, v{vM}, v16, v18")
    I(f"v_max_f32 v22, v22, v20")
    I(f"v_sub_f32 v23, v{vM}, v22")
    I(f"v_sub_f32 v24, v16, v22")
    I(f"v_sub_f32 v25, v18, v22")
    I(f"v_sub_f32 v26, v20, v22")
    for r in range(23, 27):
        I(f"v_mul_f32 v{r}, s{sC}, v{r}")
    for r in range(23, 27):
        I(f"v_exp_f32 v{r}, v{r}")
    I("s_nop 0")
    I(f"v_mul_f32 v27, v23, v{vLs0}")
    I(f"v_fma_f32 v27, v24, v17, v27")
    I(f"v_fma_f32 v27, v25, v19, v27")
    I(f"v_fma_f32 v27, v26, v21, v27")
    I(f"v_rcp_f32 v27, v27")
    I("s_nop 0")
    for r in range(23, 27):
        I(f"v_mul_f32 v{r}, v{r}, v27")
    I("s_waitcnt vmcnt(32)")
    for r in range(64):
        I(f"v_accvgpr_read_b32 v28, a{aO+r}")
        I(f"v_mul_f32 v{64+r}, v{64+r}, v24")
        I(f"v_fma_f32 v{64+r}, v28, v23, v{64+r}")
    I("s_waitcnt vmcnt(16)")
    for r in range(64):
        I(f"v_fma_f32 v{64+r}, v{128+r}, v25, v{64+r}")
    I("s_waitcnt vmcnt(0)")
    for r in range(64):
        I(f"v_fma_f32 v{64+r}, v{192+r}, v26, v{64+r}")
    I(f"v_and_b32 v28, 31, v{vL}")
    I(f"v_lshrrev_b32 v29, 5, v{vL}")
    I(f"v_lshlrev_b32 v28, 8, v28")
    I(f"v_lshl_add_u32 v28, v29, 5, v28")
    I(f"s_lshl_b32 s{sT0}, s{sWV}, 13")
    I(f"v_add_u32 v28, s{sT0}, v28")
    for u in range(4):
        for ip in range(4):
            i = 4 * u + ip
            I(f"v_cvt_pk_bf16_f32 v{128+8*u+2*ip}, v{64+i}, v{64+16+i}")
            I(f"v_cvt_pk_bf16_f32 v{128+8*u+2*ip+1}, v{64+32+i}, v{64+48+i}")
        I(f"buffer_store_dwordx4 {vr(128+8*u,4)}, v28, {sr(sOUT,4)}, 0 offen offset:{64*u}")
        I(f"buffer_store_dwordx4 {vr(128+8*u+4,4)}, v28, {sr(sOUT,4)}, 0 offen offset:{64*u+16}")
    I("s_waitcnt vmcnt(0)")
    LBL("L_end")
    I("s_endpgm")
    for tag in rescale_sites:
        emit_rescale(tag)
    L.append('.section .rodata,"a"')
    L.append(".p2align 6")
    L.append(f".amdhsa_kernel {NAME}_kernel")
    L.append("  .amdhsa_next_free_vgpr 480")
    L.append("  .amdhsa_next_free_sgpr 80")
    L.append("  .amdhsa_accum_offset 256")
    L.append("  .amdhsa_group_segment_fixed_size 0")
    L.append("  .amdhsa_kernarg_size 80")
    L.append("  .amdhsa_user_sgpr_count 2")
    L.append("  .amdhsa_user_sgpr_kernarg_segment_ptr 1")
    L.append("  .amdhsa_system_sgpr_workgroup_id_x 1")
    L.append("  .amdhsa_float_denorm_mode_32 3")
    L.append(".end_amdhsa_kernel")
    open(OUT if len(sys.argv) < 2 else sys.argv[1], "w").write("\n".join(L) + "\n")

gen()
```
